```python
import torch

def _softmax(x, axis=-1):
    return torch.softmax(x, dim=axis)
def _gelu(x):
    return torch.nn.functional.gelu(x, approximate="tanh")
def _silu(x):
    return torch.nn.functional.silu(x)
def _sigmoid(x):
    return torch.sigmoid(x)
def _layernorm(x, axis=-1, eps=1e-5):
    m = x.mean(dim=axis, keepdim=True)
    v = x.var(dim=axis, keepdim=True, unbiased=False)
    return (x - m) / torch.sqrt(v + eps)
def _scatter_add(tgt, idx, src, axis=0):
    return tgt.clone().index_add_(axis, idx, src)
def _segment_sum(src, seg, n):
    out = torch.zeros((n,) + src.shape[1:], dtype=src.dtype)
    return out.index_add_(0, seg, src)
def _pad(x, pw):
    flat = tuple(v for pair in reversed(pw) for v in pair)
    return torch.nn.functional.pad(x, flat)

kernel_name = 'standalone__structured_sparse_n_m__ragged'

def setup_inputs():

    _w = (lambda a: (lambda t: t.to(torch.bfloat16) if t.is_floating_point() else t)(torch.as_tensor(a)))
    B, S, D = 4, 2048, 576
    assert D % 4 == 0, "d_model must be divisible by M=4 for 2:4 sparsity"
    return {
        "x": _w((lambda *s: torch.randn(*s, dtype=torch.bfloat16) * 0.05)(B, S, D)),
        "w": _w((lambda *s: torch.randn(*s, dtype=torch.bfloat16) * 0.05)(D, D)),
        "b": _w((lambda *s: torch.randn(*s, dtype=torch.bfloat16) * 0.05)(D)),
    }

def reference(x, w, b):
    B, S, D = x.shape
    N, M = 2, 4
    G = D // M
    wg = w.reshape(G, M, D)
    mag = torch.abs(wg)
    order = torch.argsort(mag, 1)
    thr = (lambda x, i, axis: torch.take_along_dim(x, i, dim=axis))(mag, order[:, M - N:M - N + 1, :], 1)
    mask = (lambda x, dt: x.to(dt))(mag >= thr, w.dtype)
    wp = (wg * mask).reshape(D, D)
    return torch.einsum("bsd,df->bsf", x, wp) + b
```

```python
import sys
opts = dict(a.split('=') for a in sys.argv[1:])
D_PRE = int(opts.get('dpre', 3))
ROT = int(opts.get('rot', 1))
STAMP = int(opts.get('stamp', 0))
NST = 9
RX = 7
XSLOT = 16384
WM_BASE = 0
W9_BASE = 32768
X_BASE = 36864
LDS_TOTAL = X_BASE + RX * XSLOT
OUT_BASE = X_BASE + 2 * XSLOT
o = []
A = o.append
hdr = open('standalone__structured_sparse_n_m__ragged.s.ref').read().split('\n')
for l in hdr[:9]:
    A(l)
A(f"; @launch grid=(256,1,1) block=(512,1,1) lds={LDS_TOTAL}")
A('''.amdgcn_target "amdgcn-amd-amdhsa--gfx950"
.text
.globl standalone__structured_sparse_n_m__ragged_kernel
.p2align 8
.type standalone__structured_sparse_n_m__ragged_kernel,@function
standalone__structured_sparse_n_m__ragged_kernel:
    s_cmp_ge_u32 s2, 256
    s_cbranch_scc1 L_end''')
if STAMP:
    A("    s_memrealtime s[60:61]")
    A("    s_memtime s[62:63]")
A('''    s_load_dwordx8 s[4:11], s[0:1], 0       ; x, w, b, out
    s_load_dwordx2 s[58:59], s[0:1], 40
    s_and_b32 s32, s2, 7          ; xcd
    s_lshr_b32 s33, s2, 3         ; j
    s_lshr_b32 s34, s33, 2        ; mtl
    s_and_b32 s35, s33, 3         ; ft
    s_lshl_b32 s36, s35, 1
    s_add_u32 s36, s36, s34
    s_cmp_ge_u32 s36, 9
    s_cselect_b32 s37, 9, 0
    s_sub_u32 s36, s36, s37''')
if not ROT:
    A("    s_mov_b32 s36, 0")
A('''    s_lshl_b32 s37, s32, 3
    s_add_u32 s34, s34, s37       ; mt
    v_lshrrev_b32 v1, 6, v0
    v_and_b32 v2, 63, v0          ; lane
    s_nop 0
    v_readfirstlane_b32 s38, v1   ; wave
    s_mul_i32 s39, s34, 147456
    s_nop 2
    s_cmp_ge_u32 s38, 4
    s_cbranch_scc0 L_consumer
''')
A("; ================= producer =================")
A('''    s_sub_u32 s38, s38, 4         ; pw 0..3
    ; --- x DMA lane address: row = 8p + (i>>3), chunk' = i&7, src chunk = chunk' ^ ((4p + (i>>4))&7), p = pw + 4q
    v_lshrrev_b32 v3, 3, v2       ; i>>3
    v_and_b32 v4, 7, v2           ; chunk'
    v_lshrrev_b32 v5, 4, v2       ; i>>4
    s_and_b32 s40, s38, 1
    s_lshl_b32 s40, s40, 2
    v_add_u32 v5, s40, v5         ; (4*(p&1) + (i>>4))  in 0..7
    v_xor_b32 v4, v4, v5
    v_mul_u32_u24 v3, 1152, v3
    v_lshl_add_u32 v3, v4, 4, v3  ; v3 = x lane offset
    ; --- W main lane address: g = lane>>4 (group in batch), c = lane&15
    v_lshrrev_b32 v5, 4, v2
    v_and_b32 v6, 15, v2
    v_mul_u32_u24 v4, 4608, v5
    v_lshl_add_u32 v4, v6, 4, v4  ; v4 = w main lane offset (row j via offset:j*1152)
    ; LDS write addr main for row j: k = 16*pw + 4*g + j ; addr = WM_BASE + k*256 + ((c ^ 4j)*16)
    s_lshl_b32 s40, s38, 12       ; pw*16*256
    v_lshlrev_b32 v7, 10, v5      ; g*4*256
    v_add_u32 v7, s40, v7
    v_add_u32 v7, %d, v7
    v_lshl_add_u32 v8, v6, 4, v7          ; j=0
    v_xor_b32 v9, 4, v6
    v_lshl_add_u32 v9, v9, 4, v7          ; j=1 (+256 via offset)
    v_xor_b32 v10, 8, v6
    v_lshl_add_u32 v10, v10, 4, v7
    v_xor_b32 v11, 12, v6
    v_lshl_add_u32 v11, v11, 4, v7
    ; --- W9 lane address: l5 = lane&31, g4 = l5>>3, d = l5&7 ; row = 16pw + 4 g4 + j ; byte 1024+32ft+4d
    v_and_b32 v12, 31, v2
    v_lshrrev_b32 v13, 3, v12     ; g4
    v_and_b32 v12, 7, v12         ; d
    v_mul_u32_u24 v5, 4608, v13
    v_lshl_add_u32 v5, v12, 2, v5 ; v5 = w9 lane offset
    ; LDS addr: k = 16pw + 4 g4 + j ; pi(k) swaps bits 2,3: k bits: [1:0]=j, [3:2]=g4, [5:4]=pw -> g4' = swap bits of g4
    v_and_b32 v14, 1, v13
    v_lshrrev_b32 v15, 1, v13
    v_lshl_or_b32 v14, v14, 1, v15        ; g4'
    v_lshlrev_b32 v14, 7, v14             ; *4 rows*32B
    v_lshl_add_u32 v14, v12, 2, v14
    s_lshl_b32 s40, s38, 9                ; pw*16*32
    v_add_u32 v14, s40, v14
    v_add_u32 v12, %d, v14                ; v12 = W9 lds addr (row j via offset:j*32)
    s_waitcnt lgkmcnt(0)
''' % (WM_BASE, W9_BASE))
if STAMP:
    A("    s_memtime s[64:65]")
A('''    s_mov_b32 s12, s4             ; x SRD s[12:15]
    s_mov_b32 s13, s5
    s_mov_b32 s14, 9437184
    s_mov_b32 s15, 0x00020000
    s_mov_b32 s16, s6             ; w SRD s[16:19]
    s_mov_b32 s17, s7
    s_mov_b32 s18, 663552
    s_mov_b32 s19, 0x00020000
    s_mov_b32 s20, 0x7fff7fff
    s_mov_b32 s21, 0x000f000f
    s_mul_i32 s40, s38, 9216
    s_add_u32 s40, s40, s39
    s_lshl_b32 s41, s38, 10
    s_mul_i32 s42, s38, 18432
    s_lshl_b32 s43, s35, 8
    s_add_u32 s42, s42, s43       ; main
    s_mul_i32 s43, s38, 18432
    s_lshl_b32 s44, s35, 5
    s_add_u32 s43, s43, s44
    s_add_u32 s43, s43, 1024      ; w9
    s_mov_b32 s45, s36''')
WREG = 24
def wset(i): return WREG + 20 * (i % D_PRE)
TMP = WREG + 20 * D_PRE
queue = []
def issue_loads(i):
    b = wset(i)
    A(f"    s_mul_i32 s46, s45, 73728")
    A(f"    s_add_u32 s47, s46, s42")
    A(f"    s_add_u32 s46, s46, s43")
    for j in range(4):
        A(f"    buffer_load_dwordx4 v[{b+4*j}:{b+4*j+3}], v4, s[16:19], s47 offen offset:{j*1152}")
        queue.append(('W', i))
    for j in range(4):
        A(f"    buffer_load_dword v{b+16+j}, v5, s[16:19], s46 offen offset:{j*1152}")
        queue.append(('W', i))
    A(f"    s_lshl_b32 s46, s45, 7")
    A(f"    s_add_u32 s46, s46, s40")
    for q in range(4):
        A(f"    s_add_u32 m0, s41, {X_BASE + (i % RX) * XSLOT + q * 4096}")
        if q:
            A(f"    s_add_u32 s46, s46, {32*1152}")
        else:
            A("    s_nop 0")
        A(f"    buffer_load_dwordx4 v3, s[12:15], s46 offen lds")
        queue.append(('X', i))
    A("    s_add_u32 s45, s45, 1")
    A("    s_cmp_eq_u32 s45, 9")
    A("    s_cselect_b32 s45, 0, s45")
def wait_for(tag):
    idx = max(k for k, t in enumerate(queue) if t == tag)
    n = len(queue) - 1 - idx
    A(f"    s_waitcnt vmcnt({n})")
    del queue[:idx + 1]
def prune(cols):
    n = len(cols)
    t = lambda c, k: TMP + 8 * c + k
    for k in range(4):
        for c in range(n): A(f"    v_and_b32 v{t(c,k)}, s20, v{cols[c][k]}")
    for c in range(n): A(f"    v_pk_max_u16 v{t(c,4)}, v{t(c,0)}, v{t(c,1)}")
    for c in range(n): A(f"    v_pk_min_u16 v{t(c,5)}, v{t(c,0)}, v{t(c,1)}")
    for c in range(n): A(f"    v_pk_max_u16 v{t(c,6)}, v{t(c,2)}, v{t(c,3)}")
    for c in range(n): A(f"    v_pk_min_u16 v{t(c,7)}, v{t(c,2)}, v{t(c,3)}")
    for c in range(n): A(f"    v_pk_min_u16 v{t(c,4)}, v{t(c,4)}, v{t(c,6)}")
    for c in range(n): A(f"    v_pk_max_u16 v{t(c,5)}, v{t(c,5)}, v{t(c,7)}")
    for c in range(n): A(f"    v_pk_max_u16 v{t(c,4)}, v{t(c,4)}, v{t(c,5)}")
    for k in range(4):
        for c in range(n): A(f"    v_pk_sub_i16 v{t(c,k)}, v{t(c,k)}, v{t(c,4)}")
    for k in range(4):
        for c in range(n): A(f"    v_pk_ashrrev_i16 v{t(c,k)}, s21, v{t(c,k)}")
    for k in range(4):
        for c in range(n): A(f"    v_bfi_b32 v{cols[c][k]}, v{t(c,k)}, 0, v{cols[c][k]}")
for i in range(D_PRE):
    issue_loads(i)
for i in range(NST):
    b = wset(i)
    wait_for(('W', i))
    cols = [tuple(b + 4 * j + q for j in range(4)) for q in range(4)] + [tuple(b + 16 + j for j in range(4))]
    prune(cols)
    so = (i % 2) * 16384
    for j in range(4):
        A(f"    ds_write_b128 v{8+j}, v[{b+4*j}:{b+4*j+3}] offset:{so + j*256}")
    for j in range(4):
        A(f"    ds_write_b32 v12, v{b+16+j} offset:{(i%2)*2048 + j*32}")
    if i + D_PRE < NST:
        issue_loads(i + D_PRE)
    wait_for(('X', i))
    A("    s_waitcnt lgkmcnt(0)")
    A("    s_barrier")
if STAMP:
    A("    s_memtime s[66:67]")
    A("    s_cmp_eq_u32 s38, 0")
    A("    s_cbranch_scc0 L_end")
    A("    s_mov_b32 s70, 0")
    A("    s_branch L_stamp")
A("    s_endpgm")
A("; ================= consumer =================")
A("L_consumer:")
ACC = 64
ACC9 = 128
A('''    s_and_b32 s40, s38, 1         ; mh
    s_lshr_b32 s41, s38, 1        ; fh
    v_and_b32 v3, 31, v2          ; l&31
    v_lshrrev_b32 v4, 5, v2       ; h
    v_and_b32 v5, 15, v2          ; i = l&15
    v_lshrrev_b32 v6, 4, v2       ; G = l>>4
    ; x frag addr (32-layout): row = 64mh + (l&31) (+32 T' via offset 4096); e = h ^ ((row>>1)&7)
    s_lshl_b32 s42, s40, 6
    v_add_u32 v7, s42, v3         ; row
    v_bfe_u32 v8, v7, 1, 3
    v_xor_b32 v8, v8, v4          ; e
    v_lshlrev_b32 v7, 7, v7       ; row*128
    v_lshl_add_u32 v10, v8, 4, v7         ; t=0
    v_xor_b32 v9, 2, v8
    v_lshl_add_u32 v11, v9, 4, v7         ; t=1
    v_xor_b32 v9, 4, v8
    v_lshl_add_u32 v12, v9, 4, v7         ; t=2
    v_xor_b32 v9, 6, v8
    v_lshl_add_u32 v13, v9, 4, v7         ; t=3
    ; x frag addr (16-layout): row = 64mh + 32fh + i (+16 mb via offset 2048); e = G ^ ((row>>1)&7)
    s_lshl_b32 s43, s41, 5
    s_add_u32 s43, s43, s42
    v_add_u32 v7, s43, v5
    v_bfe_u32 v8, v7, 1, 3
    v_xor_b32 v8, v8, v6
    v_lshlrev_b32 v7, 7, v7
    v_lshl_add_u32 v14, v8, 4, v7         ; ks=0
    v_xor_b32 v9, 4, v8
    v_lshl_add_u32 v15, v9, 4, v7         ; ks=1
    ; W main tr addr: slab = l>>5 (v4), r = i>>2, unit u = 2fh+T ; addr = WM + (8 slab + r)*256 + ((u ^ r)*64) + (G&1)*32 + (i&3)*8
    v_lshrrev_b32 v7, 2, v5               ; r
    v_lshl_add_u32 v8, v4, 3, v7          ; 8 slab + r
    v_lshlrev_b32 v8, 8, v8
    v_and_b32 v9, 1, v6
    v_lshl_add_u32 v8, v9, 5, v8
    v_and_b32 v9, 3, v5
    v_lshl_add_u32 v8, v9, 3, v8
    v_add_u32 v8, %d, v8
    s_lshl_b32 s44, s41, 1                ; u0 = 2fh
    v_xor_b32 v9, s44, v7
    v_lshl_add_u32 v16, v9, 6, v8         ; T=0
    v_xor_b32 v9, 1, v9
    v_lshl_add_u32 v17, v9, 6, v8         ; T=1
    ; W9 tr addr: lane group G holds k = 8G + 4j + r (+32 ks); pi swaps bits 2,3: k bits: [1:0]=r,[2]=j,[3]=G&1,[4]=G>>1
    ;   pi(k) = r + 4*(G&1) + 8*j + 16*(G>>1) ; addr = W9 + pi*32 + (i&3)*8
    v_and_b32 v9, 1, v6
    v_lshl_add_u32 v8, v9, 2, v7          ; r + 4(G&1)
    v_lshl_add_u32 v8, v4, 4, v8          ; + 16*(G>>1)
    v_lshlrev_b32 v8, 5, v8
    v_and_b32 v9, 3, v5
    v_lshl_add_u32 v8, v9, 3, v8
    v_add_u32 v18, %d, v8                 ; j via offset 256, ks via offset 1024
    ; bias lane offsets: main: f = 128ft + 64fh + 32T + 8a + 4h ; 9th: f = 512 + 16 ft + 4G
    s_lshl_b32 s44, s35, 8
    s_lshl_b32 s45, s41, 7
    s_add_u32 s44, s44, s45
    v_lshlrev_b32 v19, 3, v4
    v_add_u32 v19, s44, v19               ; byte offset
    s_lshl_b32 s45, s35, 5
    s_add_u32 s45, s45, 1024
    v_lshlrev_b32 v20, 3, v6
    v_add_u32 v20, s45, v20
    s_waitcnt lgkmcnt(0)
    s_mov_b32 s12, s8             ; b SRD
    s_mov_b32 s13, s9
    s_mov_b32 s14, 1152
    s_mov_b32 s15, 0x00020000
    s_mov_b32 s16, s10            ; out SRD
    s_mov_b32 s17, s11
    s_mov_b32 s18, 9437184
    s_mov_b32 s19, 0x00020000''' % (WM_BASE, W9_BASE))
for T in range(2):
    for a in range(4):
        r = 24 + (T * 4 + a) * 2
        A(f"    buffer_load_dwordx2 v[{r}:{r+1}], v19, s[12:15], 0 offen offset:{T*64 + a*16}")
A("    buffer_load_dwordx2 v[40:41], v20, s[12:15], 0 offen")
A("    s_waitcnt vmcnt(0)")
for T in range(2):
    for a in range(4):
        r = 24 + (T * 4 + a) * 2
        for Tm in range(2):
            d = ACC + (T * 2 + Tm) * 16 + 4 * a
            A(f"    v_lshlrev_b32 v{d}, 16, v{r}")
            A(f"    v_and_b32 v{d+1}, 0xffff0000, v{r}")
            A(f"    v_lshlrev_b32 v{d+2}, 16, v{r+1}")
            A(f"    v_and_b32 v{d+3}, 0xffff0000, v{r+1}")
for mb in range(2):
    d = ACC9 + 4 * mb
    A(f"    v_lshlrev_b32 v{d}, 16, v40")
    A(f"    v_and_b32 v{d+1}, 0xffff0000, v40")
    A(f"    v_lshlrev_b32 v{d+2}, 16, v41")
    A(f"    v_and_b32 v{d+3}, 0xffff0000, v41")
A("    s_mov_b32 s46, 0")
A(f"    s_mov_b32 s47, {X_BASE}")
A("L_cloop:")
for k in range(6):
    A(f"    v_add_u32 v{24+k}, s47, v{10+k}")
A("    s_barrier")
FR = 136
def fx(s, Tm): return FR + 16 * s + 4 * Tm
def fw(s, T): return FR + 16 * s + 8 + 4 * T
def f9w(ks): return 32 + 12 * ks
def f9x(ks, mb): return 32 + 12 * ks + 4 + 4 * mb
ops = []
def R(t):
    s = t % 3
    for Tm in range(2):
        ops.append(('r', f"ds_read_b128 v[{fx(s,Tm)}:{fx(s,Tm)+3}], v{24+t} offset:{Tm*4096}", ('s', t)))
    for T in range(2):
        for j in range(2):
            ops.append(('r', f"ds_read_b64_tr_b16 v[{fw(s,T)+2*j}:{fw(s,T)+2*j+1}], v{16+T} offset:{(16*t+4*j)*256}", ('s', t)))
def R9(ks):
    for j in range(2):
        ops.append(('r', f"ds_read_b64_tr_b16 v[{f9w(ks)+2*j}:{f9w(ks)+2*j+1}], v18 offset:{ks*1024+j*256}", ('n', ks)))
    for mb in range(2):
        ops.append(('r', f"ds_read_b128 v[{f9x(ks,mb)}:{f9x(ks,mb)+3}], v{28+ks} offset:{mb*2048}", ('n', ks)))
def Mm(t):
    s = t % 3
    for T in range(2):
        for Tm in range(2):
            d = ACC + (T * 2 + Tm) * 16
            ops.append(('m', f"v_mfma_f32_32x32x16_bf16 v[{d}:{d+15}], v[{fw(s,T)}:{fw(s,T)+3}], v[{fx(s,Tm)}:{fx(s,Tm)+3}], v[{d}:{d+15}]", ('s', t)))
def M9(ks):
    for mb in range(2):
        d = ACC9 + 4 * mb
        ops.append(('m', f"v_mfma_f32_16x16x32_bf16 v[{d}:{d+3}], v[{f9w(ks)}:{f9w(ks)+3}], v[{f9x(ks,mb)}:{f9x(ks,mb)+3}], v[{d}:{d+3}]", ('n', ks)))
R(0); R(1); Mm(0); R(2); Mm(1); R(3); Mm(2); R9(0); R9(1); Mm(3); M9(0); M9(1)
lq = []
for kind, txt, tag in ops:
    if kind == 'r':
        A("    " + txt); lq.append(tag)
        assert len(lq) <= 15
    else:
        if tag in lq:
            idx = max(k for k, t in enumerate(lq) if t == tag)
            A(f"    s_waitcnt lgkmcnt({len(lq)-1-idx})")
            del lq[:idx + 1]
        A("    " + txt)
A('''    v_xor_b32 v16, 0x4000, v16
    v_xor_b32 v17, 0x4000, v17
    v_xor_b32 v18, 0x800, v18
    s_add_u32 s47, s47, %d
    s_cmp_eq_u32 s47, %d
    s_cselect_b32 s47, %d, s47
    s_add_u32 s46, s46, 1
    s_cmp_lt_u32 s46, 9
    s_cbranch_scc1 L_cloop''' % (XSLOT, X_BASE + RX * XSLOT, X_BASE))
if STAMP:
    A("    s_memtime s[64:65]")
A('''    ; epilogue: staging base for this wave
    s_mul_i32 s44, s38, 9216
    s_add_u32 s44, s44, %d
    ; write addr: row = (l&31) (+32 Tm via offset 4096), chunk c' = c ^ (row&7), c = 4T + a + h(after swap: lanes>=32 hold a+1)
    v_and_b32 v7, 7, v3
    v_xor_b32 v7, v7, v4                  ; (row&7) ^ h
    v_lshlrev_b32 v8, 7, v3
    v_add_u32 v8, s44, v8                 ; base + row*128
    v_lshl_add_u32 v10, v7, 4, v8         ; c0 = 0
    v_xor_b32 v9, 2, v7
    v_lshl_add_u32 v11, v9, 4, v8         ; c0 = 2
    v_xor_b32 v9, 4, v7
    v_lshl_add_u32 v12, v9, 4, v8         ; c0 = 4
    v_xor_b32 v9, 6, v7
    v_lshl_add_u32 v13, v9, 4, v8         ; c0 = 6
    ; 9th write addr: base + 8192 + (i + 16 mb)*32 + G*8
    v_lshlrev_b32 v14, 5, v5
    v_lshl_add_u32 v14, v6, 3, v14
    v_add_u32 v14, s44, v14
    ; read addr: row = l>>3 (+8 per instr: offset 1024), chunk = l&7 -> (chunk ^ (row&7))
    v_lshrrev_b32 v7, 3, v2
    v_and_b32 v9, 7, v2
    v_xor_b32 v15, v9, v7
    v_lshlrev_b32 v15, 4, v15
    v_lshl_add_u32 v15, v7, 7, v15
    v_add_u32 v15, s44, v15
    ; 9th read addr: base + 8192 + l*16
    v_lshlrev_b32 v16, 4, v2
    v_add_u32 v16, s44, v16
    ; global store offsets: main: row (l>>3)*1152 + (l&7)*16 ; soffset = tile + 64mh*1152 + 256ft + 128fh
    v_mul_u32_u24 v17, 1152, v7
    v_lshl_add_u32 v17, v9, 4, v17
    s_mul_i32 s45, s40, 73728
    s_add_u32 s45, s45, s39
    s_lshl_b32 s48, s35, 8
    s_lshl_b32 s49, s41, 7
    s_add_u32 s48, s48, s49
    s_add_u32 s48, s48, s45               ; main soffset
    ; 9th: row = l>>1, half = l&1 ; soffset = tile + (64mh+32fh)*1152 + 1024 + 32 ft
    v_lshrrev_b32 v18, 1, v2
    v_and_b32 v19, 1, v2
    v_mul_u32_u24 v18, 1152, v18
    v_lshl_add_u32 v18, v19, 4, v18
    s_mul_i32 s49, s41, 36864
    s_add_u32 s49, s49, s45
    s_lshl_b32 s50, s35, 5
    s_add_u32 s49, s49, s50
    s_add_u32 s49, s49, 1024
    s_nop 7''' % OUT_BASE)
P = 136
for T in range(2):
    for Tm in range(2):
        d = ACC + (T * 2 + Tm) * 16
        p = P + (T * 2 + Tm) * 8
        for a in range(4):
            A(f"    v_cvt_pk_bf16_f32 v{p+2*a}, v{d+4*a}, v{d+4*a+1}")
            A(f"    v_cvt_pk_bf16_f32 v{p+2*a+1}, v{d+4*a+2}, v{d+4*a+3}")
        A("    s_nop 1")
        for a in (0, 2):
            A(f"    v_permlane32_swap_b32 v{p+2*a}, v{p+2*a+2}")
            A(f"    v_permlane32_swap_b32 v{p+2*a+1}, v{p+2*a+3}")
        A("    s_nop 1")
        for a in (0, 2):
            c0 = 4 * T + a
            A(f"    ds_write_b128 v{10 + c0//2}, v[{p+2*a}:{p+2*a+3}] offset:{Tm*4096}")
for mb in range(2):
    d = ACC9 + 4 * mb
    A(f"    v_cvt_pk_bf16_f32 v{168+2*mb}, v{d}, v{d+1}")
    A(f"    v_cvt_pk_bf16_f32 v{168+2*mb+1}, v{d+2}, v{d+3}")
    A(f"    ds_write_b64 v14, v[{168+2*mb}:{168+2*mb+1}] offset:{8192 + mb*512}")
A("    s_waitcnt lgkmcnt(0)")
for q in range(8):
    A(f"    ds_read_b128 v[{64+4*q}:{64+4*q+3}], v15 offset:{q*1024}")
A(f"    ds_read_b128 v[96:99], v16 offset:8192")
for q in range(8):
    A(f"    s_waitcnt lgkmcnt({8-q})")
    A(f"    buffer_store_dwordx4 v[{64+4*q}:{64+4*q+3}], v17, s[16:19], s48 offen")
    A(f"    s_add_u32 s48, s48, {8*1152}")
A("    s_waitcnt lgkmcnt(0)")
A("    buffer_store_dwordx4 v[96:99], v18, s[16:19], s49 offen")
if STAMP:
    A("    s_memtime s[66:67]")
    A("    s_waitcnt vmcnt(0)")
    A("    s_cmp_eq_u32 s38, 0")
    A("    s_cbranch_scc0 L_end")
    A("    s_mov_b32 s70, 32")
    A('''L_stamp:
    s_memtime s[68:69]
    s_memrealtime s[72:73]
    s_waitcnt lgkmcnt(0)
    s_mov_b32 s12, s58
    s_mov_b32 s13, s59
    s_mov_b32 s14, 0x100000
    s_mov_b32 s15, 0x00020000
    v_cmp_eq_u32 vcc, 0, v2
    s_and_saveexec_b64 s[20:21], vcc
    s_cbranch_execz L_end
    s_lshl_b32 s3, s2, 6
    s_add_u32 s3, s3, s70
    v_mov_b32 v3, s3
    v_mov_b32 v4, s60
    v_mov_b32 v5, s62
    v_mov_b32 v6, s64
    v_mov_b32 v7, s66
    v_mov_b32 v8, s68
    v_mov_b32 v9, s72
    v_mov_b32 v10, 0
    v_mov_b32 v11, 0
    buffer_store_dwordx4 v[4:7], v3, s[12:15], 0 offen
    buffer_store_dwordx4 v[8:11], v3, s[12:15], 0 offen offset:16''')
NV = max(TMP + 40, 184)
A(f'''L_end:
    s_endpgm
.section .rodata,"a"
.p2align 6
.amdhsa_kernel standalone__structured_sparse_n_m__ragged_kernel
  .amdhsa_next_free_vgpr {NV}
  .amdhsa_next_free_sgpr 80
  .amdhsa_accum_offset {(NV+3)//4*4}
  .amdhsa_group_segment_fixed_size 0
  .amdhsa_kernarg_size 48
  .amdhsa_user_sgpr_count 2
  .amdhsa_user_sgpr_kernarg_segment_ptr 1
  .amdhsa_system_sgpr_workgroup_id_x 1
.end_amdhsa_kernel''')
print("\n".join(o))
```

```python
import sys
opts = dict(a.split('=') for a in sys.argv[1:])
ROT = int(opts.get('rot', 1))
STAMP = int(opts.get('stamp', 0))
PRIO = opts.get('prio', '')
DBG = opts.get('dbg', '')
XSLOT = 16384
WM_BASE = 0
W9_BASE = 32768
X_BASE = 40960
LDS_TOTAL = X_BASE + 6 * XSLOT
o = []
A = o.append
def I(s): o.append("    " + s)
hdr = open('standalone__structured_sparse_n_m__ragged.s.ref').read().split('\n')
for l in hdr[:9]:
    A(l)
A(f"; @launch grid=(256,1,1) block=(768,1,1) lds={LDS_TOTAL + (3072 if STAMP else 0)}")
A('''.amdgcn_target "amdgcn-amd-amdhsa--gfx950"
.text
.globl standalone__structured_sparse_n_m__ragged_kernel
.p2align 8
.type standalone__structured_sparse_n_m__ragged_kernel,@function
standalone__structured_sparse_n_m__ragged_kernel:
    s_cmp_ge_u32 s2, 256
    s_cbranch_scc1 L_end''')
if STAMP:
    I("s_memrealtime s[60:61]")
    I("s_memtime s[62:63]")
    I("s_load_dwordx2 s[58:59], s[0:1], 40")
A('''    s_load_dwordx8 s[4:11], s[0:1], 0       ; x, w, b, out
    v_lshrrev_b32 v1, 6, v0
    v_and_b32 v2, 63, v0          ; lane
    s_and_b32 s32, s2, 7          ; xcd
    v_readfirstlane_b32 s38, v1   ; wave
    s_lshr_b32 s33, s2, 3         ; j
    s_lshr_b32 s34, s33, 2        ; mtl
    s_and_b32 s35, s33, 3         ; ft
    s_lshl_b32 s36, s35, 1
    s_add_u32 s36, s36, s34
    s_cmp_ge_u32 s36, 9
    s_cselect_b32 s37, 9, 0
    s_sub_u32 s36, s36, s37''')
if not ROT:
    I("s_mov_b32 s36, 0")
A('''    s_lshl_b32 s37, s32, 3
    s_add_u32 s34, s34, s37       ; mt
    s_mul_i32 s39, s34, 147456
    s_cmp_ge_u32 s38, 4
    s_cbranch_scc0 L_consumer
''')
def prune_ops(cols, TMP):
    n = len(cols)
    t = lambda c, k: TMP + 8 * c + k
    pa = []
    for k in range(4):
        for c in range(n): pa.append(f"v_and_b32 v{t(c,k)}, s20, v{cols[c][k]}")
    for c in range(n): pa.append(f"v_pk_max_u16 v{t(c,4)}, v{t(c,0)}, v{t(c,1)}")
    for c in range(n): pa.append(f"v_pk_min_u16 v{t(c,5)}, v{t(c,0)}, v{t(c,1)}")
    for c in range(n): pa.append(f"v_pk_max_u16 v{t(c,6)}, v{t(c,2)}, v{t(c,3)}")
    for c in range(n): pa.append(f"v_pk_min_u16 v{t(c,7)}, v{t(c,2)}, v{t(c,3)}")
    for c in range(n): pa.append(f"v_pk_min_u16 v{t(c,4)}, v{t(c,4)}, v{t(c,6)}")
    for c in range(n): pa.append(f"v_pk_max_u16 v{t(c,5)}, v{t(c,5)}, v{t(c,7)}")
    for c in range(n): pa.append(f"v_pk_max_u16 v{t(c,4)}, v{t(c,4)}, v{t(c,5)}")
    pb = []
    for k in range(4):
        l = []
        for c in range(n): l.append(f"v_pk_sub_i16 v{t(c,k)}, v{t(c,k)}, v{t(c,4)}")
        for c in range(n): l.append(f"v_pk_ashrrev_i16 v{t(c,k)}, s21, v{t(c,k)}")
        for c in range(n): l.append(f"v_bfi_b32 v{cols[c][k]}, v{t(c,k)}, 0, v{cols[c][k]}")
        pb.append(l)
    return pa, pb
def merge(main, fills):
    out = []
    n = len(fills)
    if n == 0: return list(main)
    step = len(main) / n
    nxt = 0
    fi = 0
    for k, op in enumerate(main):
        while fi < n and k >= nxt:
            out += fills[fi]; fi += 1; nxt = fi * step
        out.append(op)
    while fi < n:
        out += fills[fi]; fi += 1
    return out
def emit_stream(stream):
    for s in stream:
        if 'pw' in DBG and s.startswith('ds_write'): continue
        if 'pl' in DBG and s.startswith('buffer_load'): continue
        if 'pv' in DBG and s.startswith('v_'): continue
        I(s)
def stamp_store(vb):
    I(f"v_mov_b32 v{vb}, s80"); I(f"v_mov_b32 v{vb+1}, s82")
    I(f"ds_write_b64 v{vb+2}, v[{vb}:{vb+1}]"); I(f"v_add_u32 v{vb+2}, 16, v{vb+2}")
WREG = 16
PTMP = 56
def wset(n): return WREG + 20 * (n % 2)
A("; ================= producers =================")
A('''    s_and_b32 s37, s38, 3         ; pw
    s_mov_b32 s20, 0x7fff7fff
    s_mov_b32 s21, 0x000f000f
    v_lshrrev_b32 v5, 4, v2       ; g = lane>>4
    v_and_b32 v6, 15, v2          ; c
    v_mul_u32_u24 v4, 4608, v5
    v_lshl_add_u32 v4, v6, 4, v4
    s_mul_i32 s42, s37, 18432
    s_lshl_b32 s43, s35, 8
    s_add_u32 s42, s42, s43       ; w base
    s_add_u32 s43, s42, 663552
    s_mul_i32 s44, s36, 73728
    s_add_u32 s44, s44, s42       ; running w soffset (stage rot)
    s_cmp_ge_u32 s38, 8
    s_cbranch_scc1 L_prodB''')
def adv_w(dst, src):
    return [f"s_add_u32 {dst}, {src}, 73728", f"s_cmp_ge_u32 {dst}, s43", f"s_cselect_b32 {dst}, s42, {dst}"]
def lds_waddr(slot):
    A('''    s_lshl_b32 s49, s37, 12
    v_lshlrev_b32 v7, 10, v5
    v_add_u32 v7, s49, v7
    v_lshl_add_u32 v8, v6, 4, v7
    v_xor_b32 v9, 4, v6
    v_lshl_add_u32 v9, v9, 4, v7
    v_xor_b32 v10, 8, v6
    v_lshl_add_u32 v10, v10, 4, v7
    v_xor_b32 v11, 12, v6
    v_lshl_add_u32 v11, v11, 4, v7''')
def w_srd():
    A('''    s_mov_b32 s16, s6             ; w SRD s[16:19]
    s_mov_b32 s17, s7
    s_mov_b32 s18, 663552
    s_mov_b32 s19, 0x00020000''')
def w_loads(n):
    b = wset(n)
    return [[f"buffer_load_dwordx4 v[{b+4*j}:{b+4*j+3}], v4, s[16:19], s44 offen offset:{j*1152}"] for j in range(4)]
A("; ---- set A: even stages + W9 pairs")
A('''    ; W9 lane: half=l>>5, g4=(l&31)>>3, d=l&7 ; offset rel. to main soffset: -256ft + 1024 + 32ft
    v_bfe_u32 v7, v2, 3, 2        ; g4
    v_and_b32 v12, 7, v2          ; d
    v_mul_u32_u24 v13, 4608, v7
    v_lshl_add_u32 v13, v12, 2, v13
    s_mul_i32 s45, s35, 224
    s_sub_u32 s45, 1024, s45
    v_add_u32 v13, s45, v13
    v_lshrrev_b32 v14, 5, v2
    v_sub_u32 v14, 0, v14
    s_waitcnt lgkmcnt(0)''')
if STAMP: I("s_memtime s[64:65]")
w_srd()
def a_loads(n):
    b = wset(n)
    l = w_loads(n)
    pre = adv_w("s45", "s44") + ["s_sub_u32 s46, s45, s44", "v_and_b32 v15, s46, v14", "v_add3_u32 v15, v15, v13, s44"]
    l9 = [[f"buffer_load_dword v{b+16+j}, v15, s[16:19], 0 offen offset:{j*1152}"] for j in range(4)]
    l9[0] = pre + l9[0]
    l9[3] += adv_w("s44", "s45")
    return l + l9
for g in a_loads(0):
    for s in g: I(s)
lds_waddr(0)
A('''    ; W9 LDS write addr: W9_BASE + half*2048 + pi(k)*32 + 4d, k = 16pw + 4g4 + j
    v_bfe_u32 v7, v2, 3, 2
    v_and_b32 v12, 1, v7
    v_lshrrev_b32 v7, 1, v7
    v_lshl_or_b32 v7, v12, 1, v7
    v_lshlrev_b32 v7, 7, v7
    v_and_b32 v12, 7, v2
    v_lshl_add_u32 v7, v12, 2, v7
    v_and_b32 v12, 2048, v14
    v_add_u32 v7, v7, v12
    s_lshl_b32 s49, s37, 9
    s_add_u32 s49, s49, %d
    v_add_u32 v12, s49, v7        ; v12 = W9 lds write addr
    s_mov_b32 s50, 0''' % W9_BASE)
if STAMP >= 2:
    I("s_lshl_b32 s88, s37, 8"); I(f"s_add_u32 s88, s88, {LDS_TOTAL}"); I("v_mov_b32 v102, s88")
if 'a' in PRIO: I("s_setprio 1")
A("L_aloop:")
for pos in range(2):
    b = wset(pos)
    if pos == 0:
        I("s_cmp_eq_u32 s50, 2"); I("s_cselect_b32 s18, 0, s18")
    I("s_waitcnt vmcnt(0)")
    if STAMP >= 2: I("s_memtime s[80:81]")
    cols = [tuple(b + 4 * j + q for j in range(4)) for q in range(4)] + [tuple(b + 16 + j for j in range(4))]
    pa, pb = prune_ops(cols, PTMP)
    emit_stream(merge(pa, a_loads(pos + 1)))
    I("s_barrier")
    st = []
    for j in range(4):
        st += pb[j]
        st.append(f"ds_write_b128 v{8+j}, v[{b+4*j}:{b+4*j+3}] offset:{j*256}")
        st.append(f"ds_write_b32 v12, v{b+16+j} offset:{pos*4096 + j*32}")
    emit_stream(st)
    if STAMP >= 2: I("s_memtime s[82:83]")
    if pos == 0:
        I("s_cmp_eq_u32 s50, 2")
    else:
        I("s_add_u32 s50, s50, 1")
    I("s_waitcnt lgkmcnt(0)")
    if STAMP >= 2: stamp_store(100)
    I("s_barrier")
    if pos == 0: I("s_cbranch_scc1 L_adone")
I("s_branch L_aloop")
A("L_adone:")
if STAMP:
    I("s_memtime s[66:67]")
    I("s_cmp_eq_u32 s37, 0")
    I("s_cbranch_scc0 L_end")
    I("s_mov_b32 s70, 0")
    I("s_branch L_stamp")
I("s_endpgm")
A("L_prodB:")
A("; ---- set B: odd stages + x DMA")
A('''    v_lshrrev_b32 v3, 3, v2       ; i>>3
    v_and_b32 v7, 7, v2           ; chunk'
    v_mul_u32_u24 v3, 1152, v3
    v_xor_b32 v8, v7, v5          ; q even: chunk' ^ (i>>4)
    v_xor_b32 v9, 4, v8           ; q odd
    v_lshl_add_u32 v12, v8, 4, v3
    v_lshl_add_u32 v13, v9, 4, v3
    v_add_u32 v13, %d, v13
    v_add_u32 v14, %d, v12
    v_add_u32 v15, %d, v13
    s_mul_i32 s40, s37, 36864
    s_add_u32 s40, s40, s39       ; x base for this wave (32 rows)
    s_add_u32 s41, s40, 1152      ; wrap limit
    s_lshl_b32 s45, s36, 7
    s_add_u32 s45, s45, s40       ; running x soffset
    s_lshl_b32 s46, s37, 12
    s_add_u32 s46, s46, %d        ; lds slot0 base for this wave
    s_add_u32 s47, s46, %d        ; wrap limit
    s_mov_b32 m0, s46
    s_waitcnt lgkmcnt(0)
    s_mov_b32 s12, s4             ; x SRD
    s_mov_b32 s13, s5
    s_mov_b32 s14, 9437184
    s_mov_b32 s15, 0x00020000''' % (9216 - 1024, 2 * (9216 - 1024), 2 * (9216 - 1024), X_BASE, 6 * XSLOT))
w_srd()
def x_loads():
    l = [[f"buffer_load_dwordx4 v{12+q}, s[12:15], s45 offen offset:{q*1024} lds"] for q in range(4)]
    l[3] += ["s_add_u32 s45, s45, 128", "s_cmp_ge_u32 s45, s41", "s_cselect_b32 s45, s40, s45",
             f"s_add_u32 m0, m0, {XSLOT}", "s_cmp_ge_u32 m0, s47", "s_cselect_b32 m0, s46, m0"]
    return l
def b_wloads(n):
    l = w_loads(n)
    l[3] += adv_w("s44", "s44") + adv_w("s44", "s44")
    return l
for s in adv_w("s44", "s44"): I(s)
for g in x_loads() + b_wloads(0) + x_loads() + x_loads() + x_loads():
    for s in g: I(s)
lds_waddr(1)
I("s_mov_b32 s50, 0")
if STAMP >= 2:
    I("s_lshl_b32 s88, s37, 8"); I(f"s_add_u32 s88, s88, {LDS_TOTAL+2048}"); I("v_mov_b32 v102, s88")
if 'b' in PRIO: I("s_setprio 1")
I("s_barrier")
A("L_bloop:")
for pos in range(2):
    b = wset(pos)
    if pos == 1:
        I("s_cmp_eq_u32 s50, 1"); I("s_cselect_b32 s18, 0, s18")
    I("s_waitcnt vmcnt(8)")
    if STAMP >= 2: I("s_memtime s[80:81]")
    cols = [tuple(b + 4 * j + q for j in range(4)) for q in range(4)]
    pa, pb = prune_ops(cols, PTMP)
    emit_stream(merge(pa, b_wloads(pos + 1) + x_loads()))
    if pos == 0:
        I("s_cmp_eq_u32 s50, 1"); I("s_cselect_b32 s14, 0, s14")
    I("s_barrier")
    xl = x_loads()
    st = []
    for j in range(4):
        st += pb[j][:6] + xl[j] + pb[j][6:]
        st.append(f"ds_write_b128 v{8+j}, v[{b+4*j}:{b+4*j+3}] offset:{16384 + j*256}")
    emit_stream(st)
    if STAMP >= 2: I("s_memtime s[82:83]")
    if pos == 1:
        I("s_add_u32 s50, s50, 1"); I("s_cmp_lt_u32 s50, 2")
    I("s_waitcnt lgkmcnt(0)")
    if STAMP >= 2: stamp_store(100)
    I("s_barrier")
I("s_cbranch_scc1 L_bloop")
if STAMP >= 2:
    I("s_cmp_eq_u32 s37, 0")
    I("s_cbranch_scc0 L_end")
    I("s_mov_b32 s70, 64")
    I("s_branch L_stamp")
I("s_endpgm")
A("; ================= consumer =================")
A("L_consumer:")
ACC = 24; ACC9 = 88
FR = 96
F9 = 144
BI = 96
A('''    s_and_b32 s40, s38, 1         ; mh
    s_lshr_b32 s41, s38, 1        ; fh
    v_and_b32 v3, 31, v2          ; l&31
    v_lshrrev_b32 v4, 5, v2       ; h
    v_and_b32 v5, 15, v2          ; i = l&15
    v_lshrrev_b32 v6, 4, v2       ; G = l>>4
    s_lshl_b32 s45, s35, 8
    s_lshl_b32 s46, s41, 7
    s_add_u32 s45, s45, s46
    v_lshlrev_b32 v19, 3, v4
    v_add_u32 v19, s45, v19
    s_lshl_b32 s46, s35, 5
    s_add_u32 s46, s46, 1024
    v_lshlrev_b32 v20, 3, v6
    v_add_u32 v20, s46, v20
    s_waitcnt lgkmcnt(0)
    s_mov_b32 s12, s8             ; b SRD
    s_mov_b32 s13, s9
    s_mov_b32 s14, 1152
    s_mov_b32 s15, 0x00020000
    s_mov_b32 s16, s10
    s_mov_b32 s17, s11
    s_mov_b32 s18, 9437184
    s_mov_b32 s19, 0x00020000''')
for T in range(2):
    for a in range(4):
        r = BI + (T * 4 + a) * 2
        I(f"buffer_load_dwordx2 v[{r}:{r+1}], v19, s[12:15], 0 offen offset:{T*64 + a*16}")
I(f"buffer_load_dwordx2 v[{BI+16}:{BI+17}], v20, s[12:15], 0 offen")
A('''    s_lshl_b32 s46, s40, 6
    v_add_u32 v7, s46, v3         ; row
    v_bfe_u32 v8, v7, 1, 3
    v_xor_b32 v8, v8, v4          ; e
    v_lshlrev_b32 v7, 7, v7
    v_add_u32 v7, %d, v7
    v_lshl_add_u32 v10, v8, 4, v7
    v_xor_b32 v9, 2, v8
    v_lshl_add_u32 v11, v9, 4, v7
    v_xor_b32 v9, 4, v8
    v_lshl_add_u32 v12, v9, 4, v7
    v_xor_b32 v9, 6, v8
    v_lshl_add_u32 v13, v9, 4, v7
    s_lshl_b32 s47, s41, 5
    s_add_u32 s47, s47, s46
    v_add_u32 v7, s47, v5
    v_bfe_u32 v8, v7, 1, 3
    v_xor_b32 v8, v8, v6
    v_lshlrev_b32 v7, 7, v7
    v_add_u32 v7, %d, v7
    v_lshl_add_u32 v14, v8, 4, v7
    v_xor_b32 v9, 4, v8
    v_lshl_add_u32 v15, v9, 4, v7
    v_lshrrev_b32 v7, 2, v5               ; r
    v_lshl_add_u32 v8, v4, 3, v7
    v_lshlrev_b32 v8, 8, v8
    v_and_b32 v9, 1, v6
    v_lshl_add_u32 v8, v9, 5, v8
    v_and_b32 v9, 3, v5
    v_lshl_add_u32 v8, v9, 3, v8
    s_lshl_b32 s47, s41, 1
    v_xor_b32 v9, s47, v7
    v_lshl_add_u32 v16, v9, 6, v8
    v_xor_b32 v9, 1, v9
    v_lshl_add_u32 v17, v9, 6, v8
    v_and_b32 v9, 1, v6
    v_lshl_add_u32 v8, v9, 2, v7
    v_lshl_add_u32 v8, v4, 4, v8
    v_lshlrev_b32 v8, 5, v8
    v_and_b32 v9, 3, v5
    v_lshl_add_u32 v8, v9, 3, v8
    v_add_u32 v18, %d, v8
    s_mul_i32 s45, s40, 73728
    s_add_u32 s45, s45, s39
    s_lshl_b32 s48, s35, 8
    s_lshl_b32 s49, s41, 7
    s_add_u32 s48, s48, s49
    s_add_u32 s48, s48, s45               ; main store soffset
    s_mul_i32 s49, s41, 36864
    s_add_u32 s49, s49, s45
    s_lshl_b32 s50, s35, 5
    s_add_u32 s49, s49, s50
    s_add_u32 s49, s49, 1024              ; 9th store soffset
    s_mov_b32 s50, 0                      ; iteration
    s_mov_b32 s51, 49152                  ; x triple toggle delta
    s_mov_b32 s52, 2048                   ; w9 slot xor constant
    s_mov_b32 s53, 0x4000
    s_waitcnt vmcnt(0)''' % (X_BASE, X_BASE, W9_BASE))
for T in range(2):
    for a in range(4):
        r = BI + (T * 4 + a) * 2
        for Tm in range(2):
            d = ACC + (T * 2 + Tm) * 16 + 4 * a
            I(f"v_lshlrev_b32 v{d}, 16, v{r}")
            I(f"v_and_b32 v{d+1}, 0xffff0000, v{r}")
            I(f"v_lshlrev_b32 v{d+2}, 16, v{r+1}")
            I(f"v_and_b32 v{d+3}, 0xffff0000, v{r+1}")
for mb in range(2):
    d = ACC9 + 4 * mb
    I(f"v_lshlrev_b32 v{d}, 16, v{BI+16}")
    I(f"v_and_b32 v{d+1}, 0xffff0000, v{BI+16}")
    I(f"v_lshlrev_b32 v{d+2}, 16, v{BI+17}")
    I(f"v_and_b32 v{d+3}, 0xffff0000, v{BI+17}")
def fx(s, Tm): return FR + 16 * s + 4 * Tm
def fw(s, T): return FR + 16 * s + 8 + 4 * T
def f9w(ks): return F9 + 12 * ks
def f9x(ks, mb): return F9 + 12 * ks + 4 + 4 * mb
def R(pos, t):
    s = (pos + t) % 3
    l = []
    l.append(('r', f"ds_read_b128 v[{fx(s,0)}:{fx(s,0)+3}], v{10+t} offset:{pos*XSLOT}", ('x', s, 0)))
    for j in range(2):
        l.append(('r', f"ds_read_b64_tr_b16 v[{fw(s,0)+2*j}:{fw(s,0)+2*j+1}], v16 offset:{(16*t+4*j)*256}", ('w', s, 0)))
    l.append(('r', f"ds_read_b128 v[{fx(s,1)}:{fx(s,1)+3}], v{10+t} offset:{pos*XSLOT+4096}", ('x', s, 1)))
    for j in range(2):
        l.append(('r', f"ds_read_b64_tr_b16 v[{fw(s,1)+2*j}:{fw(s,1)+2*j+1}], v17 offset:{(16*t+4*j)*256}", ('w', s, 1)))
    return l
def R9(pos, ks):
    l = []
    for j in range(2):
        l.append(('r', f"ds_read_b64_tr_b16 v[{f9w(ks)+2*j}:{f9w(ks)+2*j+1}], v18 offset:{ks*1024+j*256}", ('n', ks)))
    for mb in range(2):
        l.append(('r', f"ds_read_b128 v[{f9x(ks,mb)}:{f9x(ks,mb)+3}], v{14+ks} offset:{pos*XSLOT+mb*2048}", ('n', ks)))
    return l
def Mm(pos, t):
    s = (pos + t) % 3
    l = []
    for T, Tm in ((0, 0), (0, 1), (1, 0), (1, 1)):
        d = ACC + (T * 2 + Tm) * 16
        l.append(('m', f"v_mfma_f32_32x32x16_bf16 v[{d}:{d+15}], v[{fw(s,T)}:{fw(s,T)+3}], v[{fx(s,Tm)}:{fx(s,Tm)+3}], v[{d}:{d+15}]", [('w', s, T), ('x', s, Tm)]))
    return l
def M9(ks):
    l = []
    for mb in range(2):
        d = ACC9 + 4 * mb
        l.append(('m', f"v_mfma_f32_16x16x32_bf16 v[{d}:{d+3}], v[{f9w(ks)}:{f9w(ks)+3}], v[{f9x(ks,mb)}:{f9x(ks,mb)+3}], v[{d}:{d+3}]", [('n', ks)]))
    return l
lq = []
def emit(ops):
    for kind, txt, tag in ops:
        if kind in ('r', 'w'):
            I(txt); lq.append(tag)
        elif kind == 'm':
            if any(t in tag for t in lq):
                idx = max(k for k, t in enumerate(lq) if t in tag)
                n = min(len(lq) - 1 - idx, 15)
                I(f"s_waitcnt lgkmcnt({n})")
                del lq[:len(lq) - n]
            I(txt)
        elif kind == 'drain':
            I(txt); lq.clear()
        else:
            I(txt)
if STAMP >= 2:
    I("s_lshl_b32 s88, s38, 8"); I(f"s_add_u32 s88, s88, {LDS_TOTAL+1024}"); I("v_mov_b32 v23, s88")
if 'c' in PRIO: I("s_setprio 1")
I("s_barrier")
I("s_barrier")
emit(R(0, 0) + R(0, 1))
A("L_cloop:")
P = lambda s: ('p', s, None)
for pos in range(3):
    A(f"    ; ---- consumer body {pos}")
    m0, m1, m2, m3 = Mm(pos, 0), Mm(pos, 1), Mm(pos, 2), Mm(pos, 3)
    r2, r3 = R(pos, 2), R(pos, 3)
    r9 = R9(pos, 0) + R9(pos, 1)
    ops = []
    if STAMP >= 2: ops.append(P("s_memtime s[80:81]"))
    ops += [m0[0]] + r2[:3] + [m0[1]] + r2[3:] + [m0[2]] + r9[:2] + [m0[3]] + r9[2:4]
    ops += [m1[0]] + r3[:3] + [m1[1]] + r3[3:] + [m1[2]] + r9[4:6] + [P("v_xor_b32 v16, s53, v16"), P("v_xor_b32 v17, s53, v17")] + [m1[3]] + r9[6:8]
    ops += [m2[0], P("v_xor_b32 v18, s52, v18"), P("s_xor_b32 s52, s52, 4096")]
    if pos == 2:
        ops += [P(f"v_add_u32 v{10+k}, s51, v{10+k}") for k in range(2)]
    ops += [m2[1]]
    if STAMP >= 2: ops.append(P("s_memtime s[82:83]"))
    ops.append(('drain', "s_waitcnt lgkmcnt(0)", None))
    if STAMP >= 2:
        ops += [P("v_mov_b32 v20, s80"), P("v_mov_b32 v21, s82"), P("ds_write_b64 v23, v[20:21]"), P("v_add_u32 v23, 16, v23"), P("s_waitcnt lgkmcnt(0)")]
    ops.append(P("s_barrier"))
    npos = (pos + 1) % 3
    rn0, rn1 = R(npos, 0), R(npos, 1)
    n9 = M9(0) + M9(1)
    ops += [m2[2]] + rn0[:3] + [m2[3]] + rn0[3:] + [m3[0]] + rn1[:3] + [m3[1]] + rn1[3:] + [m3[2]]
    if pos == 2:
        ops += [P(f"v_add_u32 v{12+k}, s51, v{12+k}") for k in range(4)]
        ops += [m3[3], P("s_sub_u32 s51, 0, s51"), P("s_add_u32 s50, s50, 1"), P("s_cmp_lt_u32 s50, 3")] + n9
    else:
        ops += [m3[3]] + n9
    if 'cr' in DBG: ops = [x for x in ops if not x[1].startswith('ds_read')]
    if 'cm' in DBG: ops = [x for x in ops if not x[1].startswith('v_mfma')]
    emit(ops)
I("s_cbranch_scc1 L_cloop")
if STAMP: I("s_memtime s[64:65]")
A('''    ; staging: main at X_BASE + cw*8192 (x slots 0,1), 9th at X_BASE + 32768 + 49152 + cw*1024 (slot 5)
    s_lshl_b32 s47, s38, 13
    s_add_u32 s47, s47, %d
    v_and_b32 v7, 7, v3
    v_xor_b32 v7, v7, v4
    v_lshlrev_b32 v8, 7, v3
    v_add_u32 v8, s47, v8
    v_lshl_add_u32 v10, v7, 4, v8
    v_xor_b32 v9, 2, v7
    v_lshl_add_u32 v11, v9, 4, v8
    v_xor_b32 v9, 4, v7
    v_lshl_add_u32 v12, v9, 4, v8
    v_xor_b32 v9, 6, v7
    v_lshl_add_u32 v13, v9, 4, v8
    s_lshl_b32 s46, s38, 10
    s_add_u32 s46, s46, %d
    v_lshlrev_b32 v14, 5, v5
    v_lshl_add_u32 v14, v6, 3, v14
    v_add_u32 v14, s46, v14
    v_lshrrev_b32 v7, 3, v2
    v_and_b32 v9, 7, v2
    v_xor_b32 v15, v9, v7
    v_lshlrev_b32 v15, 4, v15
    v_lshl_add_u32 v15, v7, 7, v15
    v_add_u32 v15, s47, v15
    v_lshlrev_b32 v16, 4, v2
    v_add_u32 v16, s46, v16
    v_mul_u32_u24 v17, 1152, v7
    v_lshl_add_u32 v17, v9, 4, v17
    v_lshrrev_b32 v18, 1, v2
    v_and_b32 v9, 1, v2
    v_mul_u32_u24 v18, 1152, v18
    v_lshl_add_u32 v18, v9, 4, v18
    s_waitcnt lgkmcnt(0)''' % (X_BASE, 16384))
Pk = 96
def cvt_tile(T, Tm):
    d = ACC + (T * 2 + Tm) * 16
    p = Pk + (T * 2 + Tm) * 8
    for a in range(4):
        I(f"v_cvt_pk_bf16_f32 v{p+2*a}, v{d+4*a}, v{d+4*a+1}")
        I(f"v_cvt_pk_bf16_f32 v{p+2*a+1}, v{d+4*a+2}, v{d+4*a+3}")
    I("s_nop 1")
    for a in (0, 2):
        I(f"v_permlane32_swap_b32 v{p+2*a}, v{p+2*a+2}")
        I(f"v_permlane32_swap_b32 v{p+2*a+1}, v{p+2*a+3}")
    I("s_nop 1")
    for a in (0, 2):
        c0 = 4 * T + a
        I(f"ds_write_b128 v{10 + c0//2}, v[{p+2*a}:{p+2*a+3}] offset:{Tm*4096}")
cvt_tile(0, 0); cvt_tile(1, 0)
cvt_tile(0, 1)
I("s_waitcnt lgkmcnt(2)")
for q in range(4):
    I(f"ds_read_b128 v[{128+4*q}:{128+4*q+3}], v15 offset:{q*1024}")
cvt_tile(1, 1)
for mb in range(2):
    d = ACC9 + 4 * mb
    I(f"v_cvt_pk_bf16_f32 v{160+2*mb}, v{d}, v{d+1}")
    I(f"v_cvt_pk_bf16_f32 v{160+2*mb+1}, v{d+2}, v{d+3}")
    I(f"ds_write_b64 v14, v[{160+2*mb}:{160+2*mb+1}] offset:{mb*512}")
I("s_waitcnt lgkmcnt(4)")
for q in range(4):
    I(f"buffer_store_dwordx4 v[{128+4*q}:{128+4*q+3}], v17, s[16:19], s48 offen")
    I(f"s_add_u32 s48, s48, {8*1152}")
I("s_waitcnt lgkmcnt(0)")
for q in range(4, 8):
    I(f"ds_read_b128 v[{128+4*q}:{128+4*q+3}], v15 offset:{q*1024}")
I("ds_read_b128 v[24:27], v16")
for q in range(4, 8):
    I(f"s_waitcnt lgkmcnt({8-q})")
    I(f"buffer_store_dwordx4 v[{128+4*q}:{128+4*q+3}], v17, s[16:19], s48 offen")
    I(f"s_add_u32 s48, s48, {8*1152}")
I("s_waitcnt lgkmcnt(0)")
I("buffer_store_dwordx4 v[24:27], v18, s[16:19], s49 offen")
if STAMP:
    I("s_memtime s[66:67]")
    I("s_waitcnt vmcnt(0)")
    I("s_cmp_eq_u32 s38, 0")
    I("s_cbranch_scc0 L_end")
    I("s_mov_b32 s70, 32")
    A('''L_stamp:
    s_memtime s[68:69]
    s_memrealtime s[72:73]
    s_waitcnt lgkmcnt(0)
    s_mov_b32 s12, s58
    s_mov_b32 s13, s59
    s_mov_b32 s14, 0x100000
    s_mov_b32 s15, 0x00020000
    v_lshlrev_b32 v3, 4, v2
    s_lshl_b32 s3, s70, 5
    v_add_u32 v12, s3, v3
    v_add_u32 v12, %d, v12
    v_cmp_gt_u32 vcc, 16, v2
    s_and_saveexec_b64 s[20:21], vcc
    ds_read_b128 v[4:7], v12
    s_lshl_b32 s71, s2, 10
    s_lshl_b32 s3, s70, 3
    s_add_u32 s71, s71, s3
    s_add_u32 s71, s71, 0x10000
    s_waitcnt lgkmcnt(0)
    buffer_store_dwordx4 v[4:7], v3, s[12:15], s71 offen
    s_mov_b64 exec, s[20:21]
    s_cmp_eq_u32 s70, 64
    s_cbranch_scc1 L_end
    v_cmp_eq_u32 vcc, 0, v2
    s_and_saveexec_b64 s[20:21], vcc
    s_cbranch_execz L_end
    s_lshl_b32 s3, s2, 6
    s_add_u32 s3, s3, s70
    v_mov_b32 v3, s3
    v_mov_b32 v4, s60
    v_mov_b32 v5, s62
    v_mov_b32 v6, s64
    v_mov_b32 v7, s66
    v_mov_b32 v8, s68
    v_mov_b32 v9, s72
    v_mov_b32 v10, 0
    v_mov_b32 v11, 0
    buffer_store_dwordx4 v[4:7], v3, s[12:15], 0 offen
    buffer_store_dwordx4 v[8:11], v3, s[12:15], 0 offen offset:16''' % LDS_TOTAL)
NV = 168
A(f'''L_end:
    s_endpgm
.section .rodata,"a"
.p2align 6
.amdhsa_kernel standalone__structured_sparse_n_m__ragged_kernel
  .amdhsa_next_free_vgpr {NV}
  .amdhsa_next_free_sgpr 96
  .amdhsa_accum_offset {(NV+3)//4*4}
  .amdhsa_group_segment_fixed_size 0
  .amdhsa_kernarg_size 48
  .amdhsa_user_sgpr_count 2
  .amdhsa_user_sgpr_kernarg_segment_ptr 1
  .amdhsa_system_sgpr_workgroup_id_x 1
.end_amdhsa_kernel''')
if 'st' in DBG: o = [x for x in o if not ('buffer_store_dwordx4' in x and 's[16:19]' in x)]
print("\n".join(o))
```

```python
import sys
opts = dict(a.split('=') for a in sys.argv[1:])
ROT = int(opts.get('rot', 1))
STAMP = int(opts.get('stamp', 0))
PRIO = opts.get('prio', 'c')
DBG = opts.get('dbg', '')
PRE = int(opts.get('pre', 2))
QUOTA = [int(c) for c in opts.get('quota', '2332')]
ALIGN = int(opts.get('align', 1))
o = []
A = o.append
def I(s): o.append("    " + s)
def FS(k):
    if STAMP: I(f"s_memtime s[{64+2*k}:{65+2*k}]")
LDS_TOTAL = 147456
hdr = open('standalone__structured_sparse_n_m__ragged.s.ref').read().split('\n')
for l in hdr[:9]:
    A(l)
A(f"; @launch grid=(256,1,1) block=(512,1,1) lds={LDS_TOTAL}")
A('''.amdgcn_target "amdgcn-amd-amdhsa--gfx950"
.text
.globl standalone__structured_sparse_n_m__ragged_kernel
.p2align 8
.type standalone__structured_sparse_n_m__ragged_kernel,@function
standalone__structured_sparse_n_m__ragged_kernel:
    s_cmp_ge_u32 s2, 256
    s_cbranch_scc1 L_end''')
if STAMP:
    I("s_memrealtime s[60:61]")
    I("s_memtime s[62:63]")
    I("s_load_dwordx2 s[58:59], s[0:1], 40")
A('''    s_load_dwordx8 s[4:11], s[0:1], 0       ; x, w, b, out
    v_lshrrev_b32 v1, 6, v0
    v_and_b32 v2, 63, v0          ; lane
    s_and_b32 s32, s2, 7          ; xcd
    v_readfirstlane_b32 s38, v1   ; wave
    s_lshr_b32 s33, s2, 3         ; j
    v_lshrrev_b32 v5, 4, v2       ; l>>4
    v_and_b32 v6, 15, v2          ; l&15
    s_and_b32 s37, s38, 3         ; wave&3
    s_cmp_ge_u32 s33, 26
    s_cbranch_scc1 L_strip
    s_and_b32 s34, s32, 1
    s_mul_i32 s34, s34, 26
    s_add_u32 s34, s34, s33
    s_and_b32 s35, s34, 3         ; ft
    s_lshr_b32 s34, s34, 2        ; 0..12
    s_lshl_b32 s36, s35, 1
    s_add_u32 s36, s36, s34       ; rot = 0..18
    s_lshr_b32 s40, s32, 1
    s_mul_i32 s40, s40, 13
    s_add_u32 s34, s34, s40       ; mt
    s_mul_i32 s39, s34, 184320
    s_lshl_b32 s35, s35, 8
    s_cmp_ge_u32 s36, 9
    s_cselect_b32 s40, 9, 0
    s_sub_u32 s36, s36, s40
    s_cmp_ge_u32 s36, 9
    s_cselect_b32 s40, 9, 0
    s_sub_u32 s36, s36, s40''')
if not ROT: I("s_mov_b32 s36, 0")

def variant(V, NT, ROWS, WB):
    WSL = 64 * WB
    XSL = ROWS * 128
    SLOT = WSL + XSL
    NXD = ROWS // 32
    NWD = WSL // 4096
    ND = NXD + NWD
    assert 4 * SLOT <= LDS_TOTAL
    LPR = WB // 16
    RPI = 64 // LPR
    sh = LPR.bit_length() - 1
    def store_setup(wsel, va, vb):
        A(f"""    v_lshrrev_b32 v7, {sh}, v2
    s_mul_i32 s44, {"s37" if NT == 3 else wsel}, {RPI}
    s_lshr_b32 s45, {wsel}, 2
    s_mul_i32 s45, s45, {96 if NT == 3 else 0}
    s_add_u32 s44, s44, s45
    v_add_u32 v7, s44, v7                 ; row
    v_and_b32 v1, {LPR-1}, v2             ; chunk
    v_and_b32 v15, 7, v7
    v_xor_b32 v15, v15, v1
    v_mul_u32_u24 v{va}, {WB}, v7
    v_lshl_add_u32 v{va}, v15, 4, v{va}
    v_add_u32 v{va}, {SLOT}, v{va}
    v_mul_u32_u24 v{vb}, 1152, v7
    v_lshl_add_u32 v{vb}, v1, 4, v{vb}
    s_add_u32 s44, s39, s35""")
    def out_srd():
        A("""    s_mov_b32 s16, s10
    s_mov_b32 s17, s11
    s_mov_b32 s18, 9437184
    s_mov_b32 s19, 0x00020000""")
    I("s_cmp_ge_u32 s38, 4")
    I(f"s_cbranch_scc0 {V}_comp")
    A(f"; ==== {V} loader")
    if WB == 256:
        A('''    v_lshlrev_b32 v7, 2, v5
    v_xor_b32 v7, v7, v6
    v_mul_u32_u24 v8, 1152, v5
    v_lshl_add_u32 v8, v7, 4, v8
    v_add_u32 v9, 3584, v8
    v_add_u32 v10, 7168, v8
    v_add_u32 v11, 10752, v8''')
    else:
        A('''    v_lshrrev_b32 v3, 3, v2
    v_and_b32 v7, 7, v2
    v_and_b32 v4, 1, v5
    v_lshlrev_b32 v4, 2, v4
    v_xor_b32 v7, v7, v4
    v_mul_u32_u24 v8, 1152, v3
    v_lshl_add_u32 v8, v7, 4, v8
    v_add_u32 v9, 8192, v8''')
    A(f'''    s_mul_i32 s22, s37, 18432
    s_add_u32 s22, s22, s35       ; w base
    s_add_u32 s23, s22, 663552
    s_mul_i32 s40, s36, 73728
    s_add_u32 s40, s40, s22
    s_mul_i32 s27, s37, {WSL//4}
    s_mov_b32 m0, s27
    s_mul_i32 s28, s37, {NXD*1024}
    s_add_u32 s28, s28, {WSL}
    s_waitcnt lgkmcnt(0)
    s_mov_b32 s16, s6
    s_mov_b32 s17, s7
    s_mov_b32 s18, 663552
    s_mov_b32 s19, 0x00020000''')
    FS(0)
    def wd(t, setm0=True):
        l = [f"s_add_u32 m0, s27, {(t & 3) * SLOT}", "s_nop 0"] if setm0 else []
        l += [f"buffer_load_dwordx4 v{8+q}, s[16:19], s40 offen offset:{q*1024} lds" for q in range(NWD)]
        l += ["s_add_u32 s40, s40, 73728", "s_cmp_ge_u32 s40, s23", "s_cselect_b32 s40, s22, s40"]
        return l
    def xd(t):
        l = [f"s_add_u32 m0, s28, {(t & 3) * SLOT}", "s_add_u32 s41, s26, 36864"]
        l += [f"buffer_load_dwordx4 v{12+q}, s[12:15], s26 offen offset:{q*1024} lds" for q in range(4)]
        l += [f"s_add_u32 m0, s28, {(t & 3) * SLOT + 4096}", "s_add_u32 s26, s26, 128"]
        l += [f"buffer_load_dwordx4 v{12+q}, s[12:15], s41 offen offset:{q*1024} lds" for q in range(NXD - 4)]
        l += ["s_cmp_ge_u32 s26, s25", "s_cselect_b32 s26, s24, s26"]
        return l
    for x in wd(0, False): I(x)
    A(f'''    v_lshrrev_b32 v3, 3, v2
    v_and_b32 v7, 7, v2
    v_mul_u32_u24 v3, 1152, v3
    v_xor_b32 v4, v7, v5
    s_mul_i32 s24, s37, {NXD}
    s_and_b32 s24, s24, 1
    s_lshl_b32 s24, s24, 2
    v_xor_b32 v4, s24, v4         ; q even
    v_xor_b32 v7, 4, v4           ; q odd
    v_lshl_add_u32 v12, v4, 4, v3
    v_lshl_add_u32 v13, v7, 4, v3
    v_add_u32 v13, 8192, v13
    v_add_u32 v14, 16384, v12
    v_add_u32 v15, 16384, v13
    s_mul_i32 s24, s37, {NXD*9216}
    s_add_u32 s24, s24, s39
    s_add_u32 s25, s24, 1152
    s_lshl_b32 s26, s36, 7
    s_add_u32 s26, s26, s24
    s_mov_b32 s12, s4
    s_mov_b32 s13, s5
    s_mov_b32 s14, 9437184
    s_mov_b32 s15, 0x00020000''')
    for x in xd(0): I(x)
    units = []
    for t in range(9): units += [('w', t), ('x', t)]
    ui = 2
    cnt = [NWD, NXD]
    def issue_unit():
        nonlocal_ui = None
    def do_issue(n, tmax):
        nonlocal ui
        k = 0
        while k < n and ui < 18 and units[ui][1] <= tmax:
            kind, t = units[ui]
            for x in (wd(t) if kind == 'w' else xd(t)):
                if not ('pl' in DBG and x.startswith('buffer')): I(x)
            cnt.append(NWD if kind == 'w' else NXD)
            ui += 1; k += 1
    do_issue(2 * PRE - 2, 3)
    for t in range(9):
        I(f"s_waitcnt vmcnt({sum(cnt[2*t+2:])})")
        FS(1 + t)
        I("s_barrier")
        do_issue(QUOTA[t] if t < len(QUOTA) else 2, t + 3)
    I(f"s_branch {V}_storeA")
    A(f"{V}_comp:")
    ACC = 16
    WF = ACC + 16 * NT
    TM = WF + 16
    XF = TM + 20
    NV = XF + 16 * NT
    if WB == 256:
        A('''    s_mov_b32 s40, s37            ; unit u
    s_mov_b32 s41, 0''')
    else:
        A('''    s_and_b32 s40, s37, 1
    s_lshr_b32 s41, s37, 1
    s_mul_i32 s41, s41, 96''')
    A('''    v_and_b32 v3, 31, v2
    v_lshrrev_b32 v4, 5, v2       ; h
    s_lshl_b32 s42, s40, 6
    s_add_u32 s42, s42, s35
    v_lshlrev_b32 v7, 3, v4
    v_add_u32 v7, s42, v7
    s_mov_b32 s20, 0x7fff7fff
    s_mov_b32 s21, 0x000f000f
    s_waitcnt lgkmcnt(0)
    s_mov_b32 s12, s8
    s_mov_b32 s13, s9
    s_mov_b32 s14, 1152
    s_mov_b32 s15, 0x00020000''')
    for a in range(4):
        I(f"buffer_load_dwordx2 v[{XF+2*a}:{XF+2*a+1}], v7, s[12:15], 0 offen offset:{a*16}")
    A(f'''    v_add_u32 v7, s41, v3         ; row
    v_bfe_u32 v8, v7, 1, 3
    v_xor_b32 v8, v8, v4
    v_lshlrev_b32 v7, 7, v7
    v_add_u32 v7, {WSL}, v7
    v_lshl_add_u32 v10, v8, 4, v7
    v_xor_b32 v9, 2, v8
    v_lshl_add_u32 v11, v9, 4, v7
    v_xor_b32 v9, 4, v8
    v_lshl_add_u32 v12, v9, 4, v7
    v_xor_b32 v9, 6, v8
    v_lshl_add_u32 v13, v9, 4, v7
    v_lshrrev_b32 v7, 2, v6               ; r
    v_lshl_add_u32 v8, v4, 3, v7          ; 8h + r
    v_mul_u32_u24 v8, {WB}, v8
    v_and_b32 v9, 1, v5
    v_lshl_add_u32 v8, v9, 5, v8
    v_and_b32 v9, 3, v6
    v_lshl_add_u32 v8, v9, 3, v8''')
    if WB == 256:
        I("v_xor_b32 v9, s40, v7")
    else:
        I("v_lshrrev_b32 v9, 1, v7"); I("v_xor_b32 v9, s40, v9")
    I("v_lshl_add_u32 v14, v9, 6, v8")
    I("s_mov_b32 s50, 0")
    I(f"s_mov_b32 s53, {SLOT}")
    I("s_waitcnt vmcnt(0)")
    for a in range(4):
        r = XF + 2 * a
        for T in range(NT):
            d = ACC + 16 * T + 4 * a
            I(f"v_lshlrev_b32 v{d}, 16, v{r}")
            I(f"v_and_b32 v{d+1}, 0xffff0000, v{r}")
            I(f"v_lshlrev_b32 v{d+2}, 16, v{r+1}")
            I(f"v_and_b32 v{d+3}, 0xffff0000, v{r+1}")
    def RW(tau):
        s = tau % 4
        return [('r', f"ds_read_b64_tr_b16 v[{WF+4*s+2*j}:{WF+4*s+2*j+1}], v14 offset:{(16*tau+4*j)*WB}", ('w', s)) for j in range(2)]
    def RX(tau):
        s = tau % 4
        return [('r', f"ds_read_b128 v[{XF+4*NT*s+4*T}:{XF+4*NT*s+4*T+3}], v{10+tau} offset:{T*4096}", ('x', s, T)) for T in range(NT)]
    def MM(tau):
        s = tau % 4
        return [('m', f"v_mfma_f32_32x32x16_bf16 v[{ACC+16*T}:{ACC+16*T+15}], v[{WF+4*s}:{WF+4*s+3}], v[{XF+4*NT*s+4*T}:{XF+4*NT*s+4*T+3}], v[{ACC+16*T}:{ACC+16*T+15}]", [('x', s, T)]) for T in range(NT)]
    def PR(tau):
        s = tau % 4
        l = []
        g = [(WF + 4 * s + 2 * k, WF + 4 * s + 2 * k + 1, TM + 10 * (s % 2) + 5 * k) for k in range(2)]
        SW = " op_sel:[0,1] op_sel_hi:[1,0]"
        for P_, Q_, t in g: l += [f"v_and_b32 v{t}, s20, v{P_}", f"v_and_b32 v{t+1}, s20, v{Q_}"]
        for P_, Q_, t in g: l += [f"v_pk_max_u16 v{t+2}, v{t}, v{t+1}", f"v_pk_min_u16 v{t+3}, v{t}, v{t+1}"]
        for P_, Q_, t in g: l += [f"v_pk_min_u16 v{t+2}, v{t+2}, v{t+2}{SW}", f"v_pk_max_u16 v{t+3}, v{t+3}, v{t+3}{SW}"]
        for P_, Q_, t in g: l += [f"v_pk_max_u16 v{t+2}, v{t+2}, v{t+3}"]
        for P_, Q_, t in g: l += [f"v_pk_sub_i16 v{t}, v{t}, v{t+2}", f"v_pk_sub_i16 v{t+1}, v{t+1}, v{t+2}"]
        for P_, Q_, t in g: l += [f"v_pk_ashrrev_i16 v{t}, s21, v{t}", f"v_pk_ashrrev_i16 v{t+1}, s21, v{t+1}"]
        for P_, Q_, t in g: l += [f"v_bfi_b32 v{P_}, v{t}, 0, v{P_}", f"v_bfi_b32 v{Q_}, v{t+1}, 0, v{Q_}"]
        ops = [('v', x, None) for x in l]
        ops[0] = ('v', l[0], [('w', s)])
        return ops
    lq = []
    def emit(ops):
        for kind, txt, tag in ops:
            if kind == 'r':
                I(txt); lq.append(tag)
            elif kind in ('m', 'v') and tag:
                if any(t in tag for t in lq):
                    idx = max(k for k, t in enumerate(lq) if t in tag)
                    n = min(len(lq) - 1 - idx, 15)
                    I(f"s_waitcnt lgkmcnt({n})")
                    del lq[:len(lq) - n]
                I(txt)
            elif kind == 'drain':
                I(txt); lq.clear()
            else:
                I(txt)
    P = lambda s: ('p', s, None)
    A(f"""    v_add_u32 v7, s41, v3                 ; row
    v_and_b32 v15, 7, v7
    v_xor_b32 v15, v15, v4
    s_lshl_b32 s42, s40, 2
    v_xor_b32 v15, s42, v15
    v_mul_u32_u24 v7, {WB}, v7
    v_add_u32 v7, {SLOT}, v7
    v_lshl_add_u32 v8, v15, 4, v7
    v_xor_b32 v15, 2, v15
    v_lshl_add_u32 v9, v15, 4, v7""")
    store_setup("s38", 5, 6)
    out_srd()
    if 'c' in PRIO: I("s_setprio 1")
    I("s_barrier")
    FS(0)
    H = 14
    emit(RW(0) + RX(0) + RW(1) + RX(1) + RW(2) + RX(2) + PR(0) + PR(1)[:H])
    entry = list(lq)
    A(f"{V}_loop:")
    for tau in range(4):
        mm = MM(tau)
        pa = PR((tau + 2) % 4)[:H]; pb = PR((tau + 1) % 4)[H:]
        rd = RW((tau + 3) % 4) + RX((tau + 3) % 4)
        pr = []
        ia = 1
        for k in range(len(pb)):
            pr.append(pb[k])
            if k % 4 != 3 and ia < len(pa) - 4:
                pr.append(pa[ia]); ia += 1
        pr += pa[ia:]
        ops = [pa[0]]
        gaps = [[] for _ in range(NT)]
        tail = []
        if tau == 0:
            tail = [P("s_add_u32 s50, s50, 1"), P("s_and_b32 s52, s50, 3"), P(f"s_cselect_b32 s51, s53, {-3*SLOT & 0xffffffff}"),
                    P("v_add_u32 v14, s51, v14"), P("v_add_u32 v10, s51, v10")]
            rg = list(range(NT - 1)) if NT > 3 else [0, 1]
        elif tau == 1:
            rg = list(range(1, NT))
            tail = [P("v_add_u32 v11, s51, v11")]
        elif tau == 2:
            rg = list(range(NT))
            tail = [P("v_add_u32 v12, s51, v12")]
        else:
            tail = [P("s_cmp_lt_u32 s50, 8")]
            rg = list(range(NT))
        for k, r in enumerate(rd):
            gaps[rg[k * len(rg) // len(rd)]].append(r)
        tot = (len(pr) + len(rd))
        pi = 0
        for k in range(NT):
            want = (tot * (k + 1)) // NT - (tot * k) // NT
            n = max(want - len(gaps[k]), 0)
            if k == NT - 1: n = len(pr) - pi
            gaps[k] += pr[pi:pi + n]; pi += n
        if tau == 1:
            gaps[0] += [P("v_add_u32 v13, s51, v13"), ('drain', "s_waitcnt lgkmcnt(0)", None), P("s_barrier")]
        for k in range(NT):
            ops.append(mm[k]); ops += gaps[k]
        ops += tail
        if 'cr' in DBG: ops = [x for x in ops if x[0] != 'r']
        if 'cm' in DBG: ops = [x for x in ops if x[0] != 'm']
        if 'cv' in DBG: ops = [x for x in ops if x[0] != 'v']
        emit(ops)
    if not DBG: assert lq == entry, (lq, entry)
    I(f"s_cbranch_scc1 {V}_loop")
    FS(9)
    NA = 3 if NT == 5 else 2
    GA = list(range(NA)); GB = list(range(NA, NT))
    mmA = [MM(tau)[T] for tau in range(4) for T in GA]
    mmB = [MM(tau)[T] for tau in range(4) for T in GB]
    v1 = PR(1)[H:]; v2 = PR(2); v3 = PR(3)
    def zipm(a, b):
        out = []
        for k in range(max(len(a), len(b))):
            if k < len(a): out.append(a[k])
            if k < len(b): out.append(b[k])
        return out
    rd3 = RW(3) + RX(3)
    seg = [zipm(v1, v2[:H]), zipm(v2[H:], v3[:H]), v3[H:] + [P("s_nop 1")]]
    ops = []
    bq = list(mmB)
    for tau in range(3):
        fill = seg[tau]
        if tau == 0: fill = rd3[:2] + zipm(fill, rd3[2:])
        ms = mmA[NA * tau:NA * tau + NA] + [bq.pop(0) for _ in range(len(GB))] if tau < 1 else mmA[NA * tau:NA * tau + NA]
        n = len(ms)
        for k in range(n):
            ops.append(ms[k]); ops += fill[len(fill) * k // n:len(fill) * (k + 1) // n]
    ops += mmA[3 * NA:]
    emit(ops)
    def epi(T):
        d = ACC + 16 * T
        p = TMPK + 8 * (T % 2)
        l = []
        for a in range(4):
            l.append(f"v_cvt_pk_bf16_f32 v{p+2*a}, v{d+4*a}, v{d+4*a+1}")
            l.append(f"v_cvt_pk_bf16_f32 v{p+2*a+1}, v{d+4*a+2}, v{d+4*a+3}")
        l.append("s_nop 1")
        for a in (0, 2):
            l.append(f"v_permlane32_swap_b32 v{p+2*a}, v{p+2*a+2}")
            l.append(f"v_permlane32_swap_b32 v{p+2*a+1}, v{p+2*a+3}")
        l.append("s_nop 1")
        for a in (0, 2):
            l.append(f"ds_write_b128 v{8 + a//2}, v[{p+2*a}:{p+2*a+3}] offset:{T*32*WB}")
        return [P(x) for x in l]
    TMPK = TM
    fill = [x for T in GA for x in epi(T)]
    ops = [bq.pop(0), bq.pop(0)] if len(bq) >= 4 else [bq.pop(0), P("s_nop 7"), P("s_nop 3")]
    n = len(bq)
    for k in range(n):
        ops += fill[len(fill) * k // n:len(fill) * (k + 1) // n]; ops.append(bq[k])
    emit(ops)
    I("s_waitcnt lgkmcnt(0)")
    I("s_barrier")
    I("s_nop 7")
    for T in GB:
        for x in epi(T): I(x[1])
    I("s_waitcnt lgkmcnt(0)")
    FS(10)
    LPR = WB // 16
    RPI = 64 // LPR
    sh = LPR.bit_length() - 1
    def store_rows(rowlist, va=5, vb=6, r0=16):
        for q, r in enumerate(rowlist):
            I(f"ds_read_b128 v[{r0+4*q}:{r0+3+4*q}], v{va} offset:{r*WB}")
        for q, r in enumerate(rowlist):
            I(f"s_add_u32 s43, s44, {r*1152}")
            I(f"s_waitcnt lgkmcnt({len(rowlist)-1-q})")
            I(f"buffer_store_dwordx4 v[{r0+4*q}:{r0+3+4*q}], v{vb}, s[16:19], s43 offen")
    halves = [0] if NT == 5 else [0, 96]
    rowsA = [hb + r for hb in halves for r in range(0, 32 * NA, 4 * RPI)]
    rowsB = [r for r in range(32 * NA, 32 * NT, 8 * RPI)]
    A(f"{V}_storeB:")
    I("s_barrier")
    store_rows(rowsB)
    if STAMP:
        FS(11)
        I("s_waitcnt vmcnt(0)")
        FS(12)
        I("s_branch L_stamp")
    else:
        I("s_endpgm")
    A(f"{V}_storeA:")
    store_setup("s37", 3, 4)
    store_setup("s38", 5, 6)
    out_srd()
    I("s_barrier")
    store_rows(rowsA, 3, 4, 32)
    I(f"s_branch {V}_storeB")
    return NV
nv1 = variant("M", 5, 160, 256)
A('''L_strip:
    s_mul_i32 s34, s32, 43
    s_add_u32 s35, s34, 46
    s_add_u32 s34, s34, 3
    s_lshr_b32 s34, s34, 3
    s_lshr_b32 s35, s35, 3
    s_add_u32 s34, s34, s33
    s_sub_u32 s34, s34, 26
    s_cmp_ge_u32 s34, s35
    s_cbranch_scc1 L_end
    s_sub_u32 s36, s33, 22        ; rot = 4..9
    s_cmp_ge_u32 s36, 9
    s_cselect_b32 s36, 0, s36
    s_mul_i32 s39, s34, 221184    ; 192 rows
    s_mov_b32 s35, 1024''')
if not ROT: I("s_mov_b32 s36, 0")
nv2 = variant("S", 3, 192, 128)
if STAMP:
    A("L_stamp:")
    I("s_cmp_eq_u32 s37, 0"); I("s_cbranch_scc0 L_end")
    I("s_lshr_b32 s57, s38, 2"); I("s_lshl_b32 s57, s57, 5"); I("s_add_u32 s57, s57, 32")
    I("s_memrealtime s[92:93]")
    I("s_waitcnt lgkmcnt(0)")
    I("s_mov_b32 s12, s58"); I("s_mov_b32 s13, s59"); I("s_mov_b32 s14, 0x100000"); I("s_mov_b32 s15, 0x00020000")
    I("s_lshl_b32 s3, s2, 10"); I("s_lshl_b32 s4, s57, 3"); I("s_add_u32 s3, s3, s4"); I("s_add_u32 s3, s3, 0x10000")
    I("v_mov_b32 v3, 0")
    for k in range(13): I(f"v_mov_b32 v{4+k}, s{64+2*k}")
    I("v_mov_b32 v17, s62"); I("v_mov_b32 v18, s60"); I("v_mov_b32 v19, s92")
    for q in range(4): I(f"buffer_store_dwordx4 v[{4+4*q}:{7+4*q}], v3, s[12:15], s3 offen offset:{16*q}")
A("L_end:")
I("s_endpgm")
NV = max(nv1, nv2)
A(f'''.section .rodata,"a"
.p2align 6
.amdhsa_kernel standalone__structured_sparse_n_m__ragged_kernel
  .amdhsa_next_free_vgpr {NV}
  .amdhsa_next_free_sgpr 96
  .amdhsa_accum_offset {(NV+3)//4*4}
  .amdhsa_group_segment_fixed_size 0
  .amdhsa_kernarg_size 48
  .amdhsa_user_sgpr_count 2
  .amdhsa_user_sgpr_kernarg_segment_ptr 1
  .amdhsa_system_sgpr_workgroup_id_x 1
.end_amdhsa_kernel''')
text = "\n".join(o)
if ALIGN:
    import subprocess, re, tempfile
    def sizes(txt):
        open('_al.s', 'w').write(txt)
        r = subprocess.run(["clang", "-x", "assembler", "-target", "amdgcn-amd-amdhsa", "-mcpu=gfx950", "-c", "_al.s", "-o", "_al.o"], capture_output=True, text=True)
        assert r.returncode == 0, r.stderr
        d = subprocess.run(["llvm-objdump", "-d", "--mcpu=gfx950", "_al.o"], capture_output=True, text=True).stdout
        return [len(m.group(1).split()) * 4 for m in re.finditer(r"// [0-9A-F]+: ([0-9A-F ]+)", d)]
    lines = text.split("\n")
    idx = [i for i, l in enumerate(lines) if l.startswith("    ") and not l.strip().startswith(";") and not l.strip().startswith(".")]
    sz = sizes(text)[:len(idx)]
    flex = re.compile(r"^    (v_and_b32|v_add_u32|v_xor_b32|v_lshlrev_b32|v_lshrrev_b32|v_mov_b32) ")
    off = 0
    cand = None
    for k, i in enumerate(idx):
        if sz[k] == 8 and off % 8 == 4:
            if cand is not None:
                m = flex.match(lines[idx[cand]])
                lines[idx[cand]] = lines[idx[cand]].replace(m.group(1), m.group(1) + "_e64", 1)
                off += 4
            cand = None
        if sz[k] == 8: cand = None
        elif sz[k] == 4 and flex.match(lines[i]): cand = k
        off += sz[k]
    text = "\n".join(lines)
print(text)
```
